```python
import torch

def _softmax(x, axis=-1):
    return torch.softmax(x, dim=axis)
def _gelu(x):
    return torch.nn.functional.gelu(x, approximate="tanh")
def _silu(x):
    return torch.nn.functional.silu(x)
def _sigmoid(x):
    return torch.sigmoid(x)
def _layernorm(x, axis=-1, eps=1e-5):
    m = x.mean(dim=axis, keepdim=True)
    v = x.var(dim=axis, keepdim=True, unbiased=False)
    return (x - m) / torch.sqrt(v + eps)
def _scatter_add(tgt, idx, src, axis=0):
    return tgt.clone().index_add_(axis, idx, src)
def _segment_sum(src, seg, n):
    out = torch.zeros((n,) + src.shape[1:], dtype=src.dtype)
    return out.index_add_(0, seg, src)
def _pad(x, pw):
    flat = tuple(v for pair in reversed(pw) for v in pair)
    return torch.nn.functional.pad(x, flat)

kernel_name = 'standalone__kv_cache_quant_int4_int2_kv_with_per_channel_or_per_token_scales__decode'

def setup_inputs():

    _w = (lambda a: (lambda t: t.to(torch.bfloat16) if t.is_floating_point() else t)(torch.as_tensor(a)))
    B = 2
    Sq = 1
    Skv = 32768
    Hq = 32
    Hkv = 8
    Dh = 128
    bits = 3
    G = 32
    if G <= 0 or G >= Skv:
        G = max(1, Skv // 2)
    Skv = (Skv // G) * G
    ngk = Skv // G
    qmax = (1 << bits) - 1
    return {
        "q": _w((lambda *s: torch.randn(*s, dtype=torch.bfloat16) * 1.6)(B, Hq, Sq, Dh)),
        "qk": _w(torch.randint(0, qmax + 1, (B, Hkv, Skv, Dh)).to(torch.int32)),
        "qv": _w(torch.randint(0, qmax + 1, (B, Hkv, Skv, Dh)).to(torch.int32)),
        "k_scales": _w(torch.abs((lambda *s: torch.randn(*s, dtype=torch.bfloat16) * 1.6)(B, Hkv, ngk, Dh)) * 0.05 + 0.02),
        "k_zeros": _w((lambda *s: torch.randn(*s, dtype=torch.bfloat16) * 1.6)(B, Hkv, ngk, Dh) + float(qmax) / 2.0),
        "v_scales": _w(torch.abs((lambda *s: torch.randn(*s, dtype=torch.bfloat16) * 0.05)(B, Hkv, Skv, 1)) * 0.05 + 0.02),
        "v_zeros": _w((lambda *s: torch.randn(*s, dtype=torch.bfloat16) * 0.05)(B, Hkv, Skv, 1) + float(qmax) / 2.0),
    }

def reference(q, qk, qv, k_scales, k_zeros, v_scales, v_zeros):
    B, Hq, Sq, Dh = q.shape
    Hkv, Skv = qk.shape[1], qk.shape[2]
    ngk = k_scales.shape[2]
    G = Skv // ngk
    ks = (lambda x, n, axis: torch.repeat_interleave(x, n, dim=axis))(k_scales, G, axis=2)
    kz = (lambda x, n, axis: torch.repeat_interleave(x, n, dim=axis))(k_zeros, G, axis=2)
    k = ((lambda x, dt: x.to(dt))(qk, q.dtype) - kz) * ks
    v = ((lambda x, dt: x.to(dt))(qv, q.dtype) - v_zeros) * v_scales
    rep = Hq // Hkv
    if rep > 1:
        k = (lambda x, n, axis: torch.repeat_interleave(x, n, dim=axis))(k, rep, axis=1)
        v = (lambda x, n, axis: torch.repeat_interleave(x, n, dim=axis))(v, rep, axis=1)
    scale = float(Dh) ** -0.5
    logits = torch.einsum("bhqd,bhkd->bhqk", q, k) * scale
    p = _softmax(logits, axis=-1)
    o = torch.einsum("bhqk,bhkd->bhqd", p, v)
    return o
```

```python
import sys, struct

NAME = 'standalone__kv_cache_quant_int4_int2_kv_with_per_channel_or_per_token_scales__decode'
KERNEL = NAME + '_kernel'

HEADER = '''; Kernarg layout for this problem (80 bytes, ptrs only, base s[0:1]):
'''

def f2u(x): return struct.unpack('<I', struct.pack('<f', x))[0]

V_LANE=0; V_KOFF=1; V_VOFF=2; V_LKS=3; V_LVS=4
V_M=5; V_L=6; V_AL=7; V_BIAS=8; V_A=9; V_B=10; V_T0=11; V_T1=12
V_KRAW=16
V_VRAW=80
V_Q=144
V_QP=176
V_ACC=192
V_CV=224
V_S=228
V_C0=236
V_T=240
V_W=248
V_VS=252
A_KZ=0
A_VZ=16
S_K=8; S_V=12; S_KS=16; S_KZ=20; S_VS=24; S_VZ=28; S_Q=32; S_OUT=36; S_WS=40; S_DBG=44
S_PTR=48
S_W=3
S_KVH=68; S_WGI=69; S_C0=70; S_TB=72
S_IT=76; S_C=77; S_HB=78; S_TI=79; S_X=80; S_Y=81; S_MHI=82; S_P0=83; S_P1=84
L_KS=0; L_KZ=16384; L_VS=32768; L_VZ=36864; L_O=40960; L_ML=49152; L_FLAG=49280; L_SIZE=49408
WS_ML=0x80000

def vr(b,n=1): return f'v{b}' if n==1 else f'v[{b}:{b+n-1}]'
def ar(b,n=1): return f'a{b}' if n==1 else f'a[{b}:{b+n-1}]'
def sr(b,n=1): return f's{b}' if n==1 else f's[{b}:{b+n-1}]'

class Gen:
    def __init__(s, opts):
        s.o=[]; s.opts=opts
    def a(s, x): s.o.append('    '+x)
    def lab(s, x): s.o.append(x+':')
    def cm(s, x): s.o.append('    ; '+x)

    def srd(s, d, p, size):
        s.a(f's_mov_b32 s{d}, s{p}'); s.a(f's_mov_b32 s{d+1}, s{p+1}')
        s.a(f's_mov_b32 s{d+2}, {size:#x}'); s.a(f's_mov_b32 s{d+3}, 0x20000')

    def kload(s,u,c):
        r=V_KRAW+4*(8*u+c)
        s.a(f'buffer_load_dwordx4 {vr(r,4)}, v{V_KOFF}, {sr(S_K,4)}, s{S_TB+2*u} offen offset:{(c>>1)*128+(c&1)*16} {s.opts.get("kpol","nt")}')
    def vload(s,half,i):
        r=V_VRAW+4*(8*half+i)
        s.a(f'buffer_load_dwordx4 {vr(r,4)}, v{V_VOFF}, {sr(S_V,4)}, s{S_TB+(i>>1)} offen offset:{(i&1)*2048+half*256} {s.opts.get("vpol","nt")}')
    def tile_offsets(s):
        s.a(f's_lshl_b32 s{S_X}, s{S_TI}, 14')
        s.a(f's_add_u32 s{S_TB}, s{S_X}, s{S_HB}')
        for j in range(1,4): s.a(f's_add_u32 s{S_TB+j}, s{S_TB}, {4096*j}')
    def lds_k_reads(s):
        for sp in range(4): s.a(f'ds_read_b128 {vr(V_QP+4*sp,4)}, v{V_LKS} offset:{L_KS+64*sp}')
        for sp in range(4): s.a(f'ds_read_b128 {ar(A_KZ+4*sp,4)}, v{V_LKS} offset:{L_KZ+64*sp}')
    def lds_v_reads(s):
        s.a(f'ds_read_b128 {vr(V_VS,4)}, v{V_LVS} offset:{L_VS}')
        s.a(f'ds_read_b128 {ar(A_VZ,4)}, v{V_LVS} offset:{L_VZ}')

    def prologue(s):
        a=s.a
        a(f's_cmp_ge_u32 s2, 256')
        a(f's_cbranch_scc1 L_end')
        a(f's_load_dwordx16 {sr(S_PTR,16)}, s[0:1], 0')
        a(f's_load_dwordx4 {sr(S_PTR+16,4)}, s[0:1], 64')
        a(f'v_lshrrev_b32 v1, 6, v0')
        a(f'v_and_b32 v0, 63, v0')
        a(f's_lshr_b32 s{S_KVH}, s2, 4')
        a(f'v_readfirstlane_b32 s{S_W}, v1')
        a(f's_and_b32 s{S_WGI}, s2, 15')
        a(f's_lshl_b32 s{S_X}, s{S_KVH}, 6')
        a(f's_lshl_b32 s{S_C0}, s{S_WGI}, 2')
        a(f's_add_u32 s{S_C0}, s{S_C0}, s{S_X}')
        a(f's_lshl_b32 s{S_HB}, s{S_KVH}, 24')
        a(f's_add_u32 s{S_TI}, s{S_C0}, s{S_W}')
        s.tile_offsets()
        s.cm('K lane offset: row tau(m)=4*(m&3)+(m>>2), 32*g bytes')
        a('v_and_b32 v9, 3, v0'); a('v_bfe_u32 v10, v0, 2, 2')
        a('v_lshlrev_b32 v9, 11, v9'); a('v_lshl_add_u32 v9, v10, 9, v9')
        a('v_lshrrev_b32 v10, 4, v0                ; g')
        a(f'v_lshl_add_u32 v{V_KOFF}, v10, 5, v9')
        s.cm('V lane offset: row g, 16*(l&15) bytes')
        a('v_and_b32 v9, 15, v0'); a('v_lshlrev_b32 v11, 4, v9')
        a(f'v_lshl_add_u32 v{V_VOFF}, v10, 9, v11')
        s.cm('vs/vz staging offset: iteration 4w+g, chunk l&15')
        a(f's_lshl_b32 s{S_X}, s{S_W}, 8'); a(f's_add_u32 s{S_X}, s{S_X}, s{S_C0}')
        a(f'v_lshl_add_u32 v12, v10, 6, s{S_X}'); a('v_and_b32 v12, 1023, v12')
        a('v_lshl_add_u32 v12, v12, 6, v11')
        s.cm('q offset: head (l&3), 16*g bytes')
        a('v_and_b32 v13, 3, v0'); a('v_lshlrev_b32 v13, 8, v13'); a('v_lshl_add_u32 v13, v10, 4, v13')
        a('v_lshlrev_b32 v14, 4, v0')
        s.cm('LDS read addresses')
        a(f's_lshl_b32 s{S_X}, s{S_W}, 8'); a(f'v_lshl_add_u32 v{V_LKS}, v10, 4, s{S_X}')
        a(f's_lshl_b32 s{S_X}, s{S_W}, 6'); a(f'v_lshl_add_u32 v{V_LVS}, v10, 4, s{S_X}')
        a(f's_lshl_b32 s{S_P0}, s{S_KVH}, 16')
        a(f's_lshl_b32 s{S_P1}, s{S_KVH}, 10')
        a('s_waitcnt lgkmcnt(0)')
        s.srd(S_VS,S_PTR+10,0x100000); s.srd(S_VZ,S_PTR+12,0x100000)
        a(f'buffer_load_dwordx4 {vr(V_ACC+16,4)}, v12, {sr(S_VS,4)}, s{S_P0} offen nt')
        a(f'buffer_load_dwordx4 {vr(V_ACC+20,4)}, v12, {sr(S_VZ,4)}, s{S_P0} offen nt')
        s.srd(S_Q,S_PTR+0,16384)
        for sp in range(4):
            a(f'buffer_load_dwordx4 {vr(V_ACC+4*sp,4)}, v13, {sr(S_Q,4)}, s{S_P1} offen offset:{64*sp}')
        s.srd(S_KS,S_PTR+6,0x400000); s.srd(S_KZ,S_PTR+8,0x400000)
        s.cm('stage k_scales / k_zeros rows of iterations 4w..4w+3 into LDS')
        a(f's_lshl_b32 s{S_P0}, s{S_KVH}, 18')
        for j in range(4):
            a(f's_lshl_b32 s{S_X}, s{S_W}, 8'); a(f's_add_u32 s{S_X}, s{S_X}, s{S_C0}')
            a(f's_add_u32 s{S_X}, s{S_X}, {64*j}'); a(f's_and_b32 s{S_X}, s{S_X}, 1023')
            a(f's_lshl_b32 s{S_X}, s{S_X}, 8'); a(f's_add_u32 s{S_X}, s{S_X}, s{S_P0}')
            a(f's_lshl_b32 s{S_Y}, s{S_W}, 12'); a(f's_add_u32 m0, s{S_Y}, {L_KS+1024*j}')
            a('s_nop 0')
            a(f'buffer_load_dwordx4 v14, {sr(S_KS,4)}, s{S_X} offen nt lds')
            a(f's_add_u32 m0, s{S_Y}, {L_KZ+1024*j}')
            a('s_nop 0')
            a(f'buffer_load_dwordx4 v14, {sr(S_KZ,4)}, s{S_X} offen nt lds')
        s.srd(S_K,S_PTR+2,0x10000000); s.srd(S_V,S_PTR+4,0x10000000)
        for u in range(2):
            for c in range(8): s.kload(u,c)
        for half in range(2):
            for i in range(8): s.vload(half,i)
        s.srd(S_OUT,S_PTR+14,16384); s.srd(S_DBG,S_PTR+16,256); s.srd(S_WS,S_PTR+18,0x40000000)
        a(f's_mov_b32 s{S_C}, {f2u(0.08838834764831845*1.4426950408889634):#x}')
        a(f's_mov_b32 s{S_MHI}, 0xffff0000')
        a(f's_mov_b32 s{S_P0}, 0x05040100'); a(f's_mov_b32 s{S_P1}, 0x07060302')
        s.cm('vs/vz transposed into LDS: [iter][tile][g][8 tokens g+4i]')
        a(f'v_lshrrev_b32 v9, 2, v0'); a('v_and_b32 v11, 3, v0'); a('v_lshlrev_b32 v11, 2, v11')
        a('v_lshl_add_u32 v9, v9, 6, v11'); a(f's_lshl_b32 s{S_X}, s{S_W}, 10'); a(f'v_add_u32 v9, s{S_X}, v9')
        a('s_waitcnt vmcnt(44)')
        for base,lo in ((V_ACC+16,L_VS),(V_ACC+20,L_VZ)):
            for e in range(4):
                a(f'v_perm_b32 v{V_T+e}, v{base+2+(e>>1)}, v{base+(e>>1)}, s{S_P0+(e&1)}')
            for e in range(4):
                a(f'ds_write_b32 v9, v{V_T+e} offset:{lo+16*e}')
        a('s_waitcnt vmcnt(40)')
        for p in range(16):
            a(f'v_lshlrev_b32 v{V_Q+2*p}, 16, v{V_ACC+p}')
            a(f'v_and_b32 v{V_Q+2*p+1}, s{S_MHI}, v{V_ACC+p}')
        for r in range(36): a(f'v_mov_b32 v{V_ACC+r}, 0')
        a(f'v_mov_b32 v{V_M}, 0xff7fffff'); a(f'v_mov_b32 v{V_L}, 0')
        a(f's_mov_b32 s{S_IT}, 0')
        a('s_waitcnt vmcnt(32) lgkmcnt(0)')
        a('s_barrier')
        s.lds_k_reads(); s.lds_v_reads()

    def body(s, last):
        a=s.a
        if not last:
            a(f's_add_u32 s{S_TI}, s{S_TI}, 64'); a(f's_and_b32 s{S_TI}, s{S_TI}, 1023')
            s.tile_offsets()
        a('s_waitcnt lgkmcnt(0)')
        s.cm("q' = bf16(q * ks)")
        for p in range(16):
            a(f'v_lshlrev_b32 v{V_T0}, 16, v{V_QP+p}')
            a(f'v_and_b32 v{V_T1}, s{S_MHI}, v{V_QP+p}')
            a(f'v_mul_f32 v{V_T0}, v{V_T0}, v{V_Q+2*p}')
            a(f'v_mul_f32 v{V_T1}, v{V_T1}, v{V_Q+2*p+1}')
            a(f'v_cvt_pk_bf16_f32 v{V_QP+p}, v{V_T0}, v{V_T1}')
        a('s_nop 1')
        s.cm("corr = sum_d q'*kz")
        for sp in range(4):
            a(f'v_mfma_f32_16x16x32_bf16 {vr(V_C0,4)}, {ar(A_KZ+4*sp,4)}, {vr(V_QP+4*sp,4)}, {vr(V_C0,4) if sp else 0}')
        s.cm('QK^T')
        out=32
        for u in range(2):
            for sp in range(4):
                a(f's_waitcnt vmcnt({out-2})')
                r=V_KRAW+4*(8*u+2*sp); t=V_T+4*(sp&1)
                for e in range(8): a(f'v_cvt_f32_i32 v{r+e}, v{r+e}')
                for e in range(4): a(f'v_cvt_pk_bf16_f32 v{t+e}, v{r+2*e}, v{r+2*e+1}')
                if last:
                    out-=2; a('s_nop 1')
                else:
                    s.kload(u,2*sp); s.kload(u,2*sp+1)
                a(f'v_mfma_f32_16x16x32_bf16 {vr(V_S+4*u,4)}, {vr(t,4)}, {vr(V_QP+4*sp,4)}, {vr(V_S+4*u,4) if sp else 0}')
        s.cm('online softmax')
        for e in range(4):
            a(f'v_lshlrev_b32 v{V_T+2*e}, 16, v{V_VS+e}')
            a(f'v_and_b32 v{V_T+2*e+1}, s{S_MHI}, v{V_VS+e}')
        S=V_S
        a(f'v_max3_f32 v{V_A}, v{S}, v{S+1}, v{S+2}')
        a(f'v_max3_f32 v{V_A}, v{V_A}, v{S+3}, v{S+4}')
        a(f'v_max3_f32 v{V_A}, v{V_A}, v{S+5}, v{S+6}')
        a(f'v_max_f32 v{V_A}, v{V_A}, v{S+7}')
        a(f'v_mov_b32 v{V_B}, v{V_A}')
        if not last:
            a(f'v_add_u32 v{V_LKS}, 1024, v{V_LKS}'); a(f'v_add_u32 v{V_LVS}, 256, v{V_LVS}')
        else:
            a('s_nop 1')
        a(f'v_permlane32_swap_b32 v{V_A}, v{V_B}')
        a(f'v_max_f32 v{V_A}, v{V_A}, v{V_B}')
        a(f'v_mov_b32 v{V_B}, v{V_A}')
        if not last: s.lds_k_reads()
        else: a('s_nop 1')
        a(f'v_permlane16_swap_b32 v{V_A}, v{V_B}')
        a(f'v_max_f32 v{V_A}, v{V_A}, v{V_B}')
        a(f'v_sub_f32 v{V_A}, v{V_A}, v{V_C0}')
        a(f'v_mul_f32 v{V_A}, s{S_C}, v{V_A}')
        a(f'v_max_f32 v{V_A}, v{V_A}, v{V_M}')
        a(f'v_sub_f32 v{V_AL}, v{V_M}, v{V_A}')
        a(f'v_exp_f32 v{V_AL}, v{V_AL}')
        a(f'v_fma_f32 v{V_BIAS}, v{V_C0}, s{S_C}, v{V_A}')
        a(f'v_mov_b32 v{V_M}, v{V_A}')
        for e in range(8): a(f'v_fma_f32 v{S+e}, v{S+e}, s{S_C}, -v{V_BIAS}')
        for e in range(8): a(f'v_exp_f32 v{S+e}, v{S+e}')
        a(f'v_mul_f32 v{V_L}, v{V_L}, v{V_AL}')
        for e in range(8): a(f'v_mul_f32 v{V_T+e}, v{V_T+e}, v{S+e}')
        for e in range(4): a(f'v_cvt_pk_bf16_f32 v{V_W+e}, v{V_T+2*e}, v{V_T+2*e+1}')
        for e in range(8): a(f'v_add_f32 v{V_L}, v{V_L}, v{S+e}')
        for r in range(36): a(f'v_mul_f32 v{V_ACC+r}, v{V_AL}, v{V_ACC+r}')
        a('s_nop 1')
        s.cm('PV')
        a(f'v_mfma_f32_16x16x32_bf16 {vr(V_CV,4)}, {ar(A_VZ,4)}, {vr(V_W,4)}, {vr(V_CV,4)}')
        for half in range(2):
            a(f's_waitcnt vmcnt({out-8})')
            for j in range(4):
                t=V_T+4*(j&1)
                for i in range(8):
                    r=V_VRAW+4*(8*half+i)+j
                    a(f'v_cvt_f32_i32 v{r}, v{r}')
                for e in range(4):
                    r=V_VRAW+4*(8*half+2*e)+j
                    a(f'v_cvt_pk_bf16_f32 v{t+e}, v{r}, v{r+4}')
                a('s_nop 1')
                d=V_ACC+16*half+4*j
                a(f'v_mfma_f32_16x16x32_bf16 {vr(d,4)}, {vr(t,4)}, {vr(V_W,4)}, {vr(d,4)}')
            if last: out-=8
            else:
                for i in range(8): s.vload(half,i)
        if not last:
            s.lds_v_reads()

    def wg_combine(s):
        a=s.a
        s.cm('l: sum over the 4 lane groups')
        a(f'v_mov_b32 v{V_B}, v{V_L}')
        a('v_and_b32 v9, 3, v0'); a('v_lshrrev_b32 v11, 4, v0')
        a(f'v_permlane32_swap_b32 v{V_L}, v{V_B}')
        a(f'v_add_f32 v{V_L}, v{V_L}, v{V_B}')
        a(f'v_mov_b32 v{V_B}, v{V_L}')
        a('v_lshlrev_b32 v12, 4, v9'); a('v_lshl_add_u32 v12, v11, 6, v12')
        a(f'v_permlane16_swap_b32 v{V_L}, v{V_B}')
        a(f'v_add_f32 v{V_L+1}, v{V_L}, v{V_B}'); a(f'v_mov_b32 v{V_L}, v{V_M}   ; v[6:7] = (m, l)')
        a(f's_lshl_b32 s{S_X}, s{S_W}, 11'); a(f'v_add_u32 v12, s{S_X}, v12')
        a(f's_lshl_b32 s{S_X}, s{S_W}, 5'); a(f'v_lshl_add_u32 v13, v9, 3, s{S_X}')
        for r in range(32): a(f'v_sub_f32 v{V_ACC+r}, v{V_ACC+r}, v{V_CV}')
        a('s_mov_b32 exec_lo, 0x000f000f'); a('s_mov_b32 exec_hi, 0x000f000f')
        for hj in range(8):
            a(f'ds_write_b128 v12, {vr(V_ACC+4*hj,4)} offset:{L_O+256*hj}')
        a('s_mov_b64 exec, 15')
        a(f'ds_write_b64 v13, {vr(V_L,2)} offset:{L_ML}')
        a('s_mov_b64 exec, -1')
        s.cm('reader: wave = head h, lane = d pair')
        a('v_and_b32 v9, 1, v0'); a('v_lshlrev_b32 v9, 9, v9')
        a('v_bfe_u32 v10, v0, 1, 2'); a('v_lshl_add_u32 v9, v10, 2, v9')
        a('v_bfe_u32 v10, v0, 3, 2'); a('v_lshl_add_u32 v9, v10, 6, v9')
        a('v_lshrrev_b32 v10, 5, v0'); a('v_lshl_add_u32 v9, v10, 10, v9')
        a(f's_lshl_b32 s{S_X}, s{S_W}, 4'); a(f's_add_u32 s{S_X}, s{S_X}, {L_O}'); a(f'v_add_u32 v9, s{S_X}, v9')
        a(f's_lshl_b32 s{S_X}, s{S_W}, 3'); a(f'v_mov_b32 v10, s{S_X}')
        a('s_waitcnt lgkmcnt(0)')
        a('s_barrier')
        for w in range(4):
            a(f'ds_read_b64 {vr(32+2*w,2)}, v10 offset:{L_ML+32*w}')
        for w in range(4):
            if w: a('v_add_u32 v9, 2048, v9')
            a(f'ds_read2_b32 {vr(24+2*w,2)}, v9 offset1:64')
        a('s_waitcnt lgkmcnt(4)')
        a('v_max3_f32 v18, v32, v34, v36'); a('v_max_f32 v18, v18, v38')
        for w in range(4): a(f'v_sub_f32 v{32+2*w}, v{32+2*w}, v18')
        for w in range(4): a(f'v_exp_f32 v{32+2*w}, v{32+2*w}')
        a('s_waitcnt lgkmcnt(0)')
        a('v_mul_f32 v19, v32, v33'); a('v_mul_f32 v16, v32, v24'); a('v_mul_f32 v17, v32, v25')
        for w in range(1,4):
            a(f'v_fmac_f32 v19, v{32+2*w}, v{33+2*w}')
            a(f'v_fmac_f32 v16, v{32+2*w}, v{24+2*w}')
            a(f'v_fmac_f32 v17, v{32+2*w}, v{25+2*w}')

    def publish(s, sc):
        a=s.a
        s.cm('publish the WG partial')
        a(f's_lshl_b32 s{S_X}, s2, 11'); a(f's_lshl_b32 s{S_Y}, s{S_W}, 9'); a(f's_add_u32 s{S_X}, s{S_X}, s{S_Y}')
        a('v_lshlrev_b32 v9, 3, v0')
        a(f'buffer_store_dwordx2 v[16:17], v9, {sr(S_WS,4)}, s{S_X} offen {sc}')
        a(f's_lshl_b32 s{S_X}, s2, 5'); a(f's_lshl_b32 s{S_Y}, s{S_W}, 3'); a(f's_add_u32 s{S_X}, s{S_X}, s{S_Y}')
        a(f's_add_u32 s{S_X}, s{S_X}, {WS_ML:#x}')
        a('s_mov_b64 exec, 1')
        a(f'buffer_store_dwordx2 v[18:19], v9, {sr(S_WS,4)}, s{S_X} offen {sc}')
        a('s_mov_b64 exec, -1')

    def final_combine(s, sc):
        a=s.a
        s.cm('final combine over the 16 WG partials of this kv head')
        a(f's_lshl_b32 s{S_X}, s{S_KVH}, 9'); a(f's_lshl_b32 s{S_Y}, s{S_W}, 3'); a(f's_add_u32 s{S_X}, s{S_X}, s{S_Y}')
        a(f's_add_u32 s{S_X}, s{S_X}, {WS_ML:#x}')
        a('v_and_b32 v10, 15, v0'); a('v_lshlrev_b32 v10, 5, v10')
        a(f'buffer_load_dwordx2 v[20:21], v10, {sr(S_WS,4)}, s{S_X} offen {sc}')
        a(f's_lshl_b32 s{S_X}, s{S_KVH}, 15'); a(f's_lshl_b32 s{S_Y}, s{S_W}, 9'); a(f's_add_u32 s{S_X}, s{S_X}, s{S_Y}')
        a('v_lshlrev_b32 v9, 3, v0')
        for j in range(16):
            if j and j%2==0: a(f's_add_u32 s{S_X}, s{S_X}, 4096')
            a(f'buffer_load_dwordx2 {vr(32+2*j,2)}, v9, {sr(S_WS,4)}, s{S_X} offen offset:{2048*(j&1)} {sc}')
        a('s_waitcnt vmcnt(16)')
        a('v_mov_b32 v22, v20')
        for sh in (8,4,2,1):
            a('s_nop 1')
            a(f'v_max_f32_dpp v22, v22, v22 row_ror:{sh} row_mask:0xf bank_mask:0xf')
        a('v_sub_f32 v20, v20, v22'); a('v_exp_f32 v20, v20'); a('s_nop 0')
        a('v_mul_f32 v21, v21, v20')
        for sh in (8,4,2,1):
            a('s_nop 1')
            a(f'v_add_f32_dpp v21, v21, v21 row_ror:{sh} row_mask:0xf bank_mask:0xf')
        a('v_rcp_f32 v21, v21'); a('v_mov_b32 v16, 0'); a('v_mov_b32 v17, 0')
        a('v_mul_f32 v20, v20, v21')
        a(f's_lshl_b32 s{S_X}, s{S_KVH}, 10'); a(f's_lshl_b32 s{S_Y}, s{S_W}, 8'); a(f's_add_u32 s{S_X}, s{S_X}, s{S_Y}')
        for j in range(16):
            a(f's_waitcnt vmcnt({15-j})')
            a(f'v_fmac_f32_dpp v16, v20, v{32+2*j} row_newbcast:{j} row_mask:0xf bank_mask:0xf')
            a(f'v_fmac_f32_dpp v17, v20, v{33+2*j} row_newbcast:{j} row_mask:0xf bank_mask:0xf')
        a('v_lshlrev_b32 v9, 2, v0')
        a('v_cvt_pk_bf16_f32 v16, v16, v17')
        a(f'buffer_store_dword v16, v9, {sr(S_OUT,4)}, s{S_X} offen')

    def main_kernel(s, name):
        a=s.a
        s.o.append(f'.globl {name}\n.p2align 8\n.type {name},@function\n{name}:')
        s.prologue()
        s.lab('L_loop')
        s.body(False)
        a(f's_add_u32 s{S_IT}, s{S_IT}, 1'); a(f's_cmp_lt_u32 s{S_IT}, 15'); a('s_cbranch_scc1 L_loop')
        s.body(True)
        s.wg_combine()
        if s.opts['mode']=='two':
            s.publish('')
        else:
            s.publish('sc1')
            a('s_waitcnt vmcnt(0)')
            a('s_barrier')
            a(f's_cmp_lg_u32 s{S_W}, 0'); a('s_cbranch_scc1 L_wait')
            a(f's_and_b32 s{S_X}, s{S_KVH}, 3'); a(f's_lshl_b32 s{S_X}, s{S_X}, 6'); a(f's_and_b32 s{S_Y}, s{S_KVH}, 12'); a(f's_add_u32 s{S_X}, s{S_X}, s{S_Y}')
            a('v_mov_b32 v9, 0'); a('v_mov_b32 v10, 1'); a('s_mov_b64 exec, 1')
            a(f'buffer_atomic_add v10, v9, {sr(S_DBG,4)}, s{S_X} offen sc0')
            a('s_waitcnt vmcnt(0)')
            a(f'ds_write_b32 v9, v10 offset:{L_FLAG}')
            a('s_mov_b64 exec, -1')
            a('s_waitcnt lgkmcnt(0)')
            s.lab('L_wait')
            a('s_barrier')
            a('v_mov_b32 v9, 0')
            a(f'ds_read_b32 v10, v9 offset:{L_FLAG}')
            a('s_waitcnt lgkmcnt(0)')
            a(f'v_readfirstlane_b32 s{S_X}, v10')
            a('s_nop 3')
            a(f's_cmp_lg_u32 s{S_X}, 15'); a('s_cbranch_scc1 L_end')
            s.final_combine('sc1')
        s.lab('L_end')
        a('s_endpgm')

    def combine_kernel(s, name):
        a=s.a
        s.o.append(f'.globl {name}\n.p2align 8\n.type {name},@function\n{name}:')
        a('s_cmp_ge_u32 s2, 64'); a('s_cbranch_scc1 L_end2')
        a(f's_load_dwordx2 {sr(S_PTR,2)}, s[0:1], 56'); a(f's_load_dwordx2 {sr(S_PTR+2,2)}, s[0:1], 72')
        a(f's_lshr_b32 s{S_KVH}, s2, 2'); a(f's_and_b32 s{S_W}, s2, 3')
        a('s_waitcnt lgkmcnt(0)')
        s.srd(S_OUT,S_PTR,16384); s.srd(S_WS,S_PTR+2,0x40000000)
        s.final_combine('')
        s.lab('L_end2')
        a('s_endpgm')

def kd(name, vgpr, acc, sgpr):
    return f'''.amdhsa_kernel {name}
  .amdhsa_next_free_vgpr {vgpr}
  .amdhsa_next_free_sgpr {sgpr}
  .amdhsa_accum_offset {acc}
  .amdhsa_group_segment_fixed_size 0
  .amdhsa_kernarg_size 80
  .amdhsa_user_sgpr_count 2
  .amdhsa_user_sgpr_kernarg_segment_ptr 1
  .amdhsa_system_sgpr_workgroup_id_x 1
.end_amdhsa_kernel
'''

def generate(opts):
    g=Gen(opts)
    hdr=HEADER
    if opts['mode']=='two':
        hdr+=f'; @launch kernel={KERNEL} grid=(256,1,1) block=(256,1,1) lds={L_SIZE}\n'
        hdr+=f'; @launch kernel=combine_kernel grid=(64,1,1) block=(64,1,1) lds=0\n'
    else:
        hdr+=f'; @launch grid=(256,1,1) block=(256,1,1) lds={L_SIZE}\n'
    hdr+='.amdgcn_target "amdgcn-amd-amdhsa--gfx950"\n.text\n'
    g.main_kernel(KERNEL)
    if opts['mode']=='two': g.combine_kernel('combine_kernel')
    tail='.section .rodata,"a"\n.p2align 6\n'+kd(KERNEL,276,256,96)
    if opts['mode']=='two': tail+='.p2align 6\n'+kd('combine_kernel',64,64,96)
    return hdr+'\n'.join(g.o)+'\n'+tail

if __name__=='__main__':
    opts={'mode':'one'}
    out=sys.argv[1]
    for kv in sys.argv[2:]:
        k,v=kv.split('='); opts[k]=v
    open(out,'w').write(generate(opts))
```
